```python
import torch

def _softmax(x, axis=-1):
    return torch.softmax(x, dim=axis)
def _gelu(x):
    return torch.nn.functional.gelu(x, approximate="tanh")
def _silu(x):
    return torch.nn.functional.silu(x)
def _sigmoid(x):
    return torch.sigmoid(x)
def _layernorm(x, axis=-1, eps=1e-5):
    m = x.mean(dim=axis, keepdim=True)
    v = x.var(dim=axis, keepdim=True, unbiased=False)
    return (x - m) / torch.sqrt(v + eps)
def _scatter_add(tgt, idx, src, axis=0):
    return tgt.clone().index_add_(axis, idx, src)
def _segment_sum(src, seg, n):
    out = torch.zeros((n,) + src.shape[1:], dtype=src.dtype)
    return out.index_add_(0, seg, src)
def _pad(x, pw):
    flat = tuple(v for pair in reversed(pw) for v in pair)
    return torch.nn.functional.pad(x, flat)

kernel_name = 'standalone__deep_cross_xdeepfm__recsys'

def setup_inputs():

    _w = (lambda a: (lambda t: t.to(torch.bfloat16) if t.is_floating_point() else t)(torch.as_tensor(a)))
    B, F, D, L = 1024, 26, 128, 3
    V = min(100000, 100000)
    Din = F * D
    return {
        "idx": _w((lambda lo, hi, *s: torch.randint(lo, hi, s))(0, V, B, F).to(torch.int64)),
        "table": _w((lambda *s: torch.randn(*s, dtype=torch.bfloat16) * 0.8)(V, D)),
        "ws_cin": _w((lambda *s: torch.randn(*s, dtype=torch.bfloat16) * 0.2)(L, F, F, F) * (1.0 / F)),
        "w_cin_out": _w((lambda *s: torch.randn(*s, dtype=torch.bfloat16) * 0.2)(L * F) * ((L * F) ** -0.5)),
        "w_dnn1": _w((lambda *s: torch.randn(*s, dtype=torch.bfloat16) * 0.8)(Din, Din) * (Din ** -0.5)),
        "b_dnn1": _w((lambda *s: torch.randn(*s, dtype=torch.bfloat16) * 3.2)(Din) * 0.1),
        "w_dnn2": _w((lambda *s: torch.randn(*s, dtype=torch.bfloat16) * 0.2)(Din) * (Din ** -0.5)),
        "b_out": _w((lambda *s: torch.randn(*s, dtype=torch.bfloat16) * 0.2)(1)),
    }

def reference(idx, table, ws_cin, w_cin_out, w_dnn1, b_dnn1, w_dnn2, b_out):
    x0 = table[idx]
    B = x0.shape[0]
    L = ws_cin.shape[0]
    xk = x0
    pooled = []
    for l in range(L):
        xk = torch.einsum('bid,bjd,hij->bhd', xk, x0, ws_cin[l])
        pooled.append(xk.sum(axis=-1))
    p_plus = torch.stack(pooled, axis=1).reshape(B, -1)
    logit_cin = p_plus @ w_cin_out
    h = x0.reshape(B, -1)
    h = _gelu(h @ w_dnn1 + b_dnn1)
    logit_dnn = h @ w_dnn2
    return logit_cin + logit_dnn + b_out
```

```python
class Asm:
    def __init__(self):
        self.lines = []
        self.lab = 0
    def __call__(self, s):
        for l in s.strip('\n').split('\n'):
            self.lines.append('    ' + l.strip() if not l.strip().endswith(':') else l.strip())
    def label(self, name):
        self.lines.append(name + ':')
    def newlabel(self, p='L'):
        self.lab += 1
        return f'{p}_{self.lab}'
    def comment(self, s):
        self.lines.append('    ; ' + s)
    def text(self):
        return '\n'.join(self.lines) + '\n'

def v(i, n=1):
    return f'v{i}' if n == 1 else f'v[{i}:{i+n-1}]'
def s(i, n=1):
    return f's{i}' if n == 1 else f's[{i}:{i+n-1}]'

HEADER = """; Kernarg layout for this problem (88 bytes, ptrs only, base s[0:1]):
"""
NAME = 'standalone__deep_cross_xdeepfm__recsys_kernel'

def wrap(body, grid, block, lds, vgpr=256, sgpr=102, accum=256):
    return (HEADER + f"; @launch grid=({grid},1,1) block=({block},1,1) lds={lds}\n"
    '.amdgcn_target "amdgcn-amd-amdhsa--gfx950"\n.text\n'
    f'.globl {NAME}\n.p2align 8\n.type {NAME},@function\n{NAME}:\n' + body +
    f'''.section .rodata,"a"
.p2align 6
.amdhsa_kernel {NAME}
  .amdhsa_next_free_vgpr {vgpr}
  .amdhsa_next_free_sgpr {sgpr}
  .amdhsa_accum_offset {accum}
  .amdhsa_group_segment_fixed_size 0
  .amdhsa_kernarg_size 88
  .amdhsa_user_sgpr_count 2
  .amdhsa_user_sgpr_kernarg_segment_ptr 1
  .amdhsa_system_sgpr_workgroup_id_x 1
.end_amdhsa_kernel
''')
```

```python
import sys, math, struct
from asmlib import *

def f32(x): return '0x%08x' % struct.unpack('<I', struct.pack('<f', x))[0]

OPT = dict(stamps=0, nomfma=0, nocin=1, ns=4, mapping='n', noepi=0, noload=0, cyc=0, l2test=0,
           rot=1, win=4, gshift=0, pfw=32, cpf=0, cpfskip=208, shape=16, pf=0, pfflag='', pf0=2, snake=1)
for a_ in sys.argv[2:]:
    k_, v_ = a_.split('='); OPT[k_] = int(v_) if v_.lstrip('-').isdigit() else v_
NS = OPT['ns']
NST = 52
SLOT = 32768
LDS_BYTES = NS*SLOT + 16384
IDXLDS = NS*SLOT
STAMP_OFF = 1 << 20
NSTAMP = 12
NARR = 26 + (0 if OPT['nocin'] else 6)
NROWS = 52 + (0 if OPT['nocin'] else 4)
SH = OPT['shape']
PFF = OPT['pfflag'].replace('+', ' ')

A = Asm()
S_IDX, S_TAB, S_WCIN, S_WCO, S_W1, S_B1, S_W2, S_BO, S_OUT, S_DBG, S_WS = 4,6,8,10,12,14,16,18,20,22,24
R_IDX, R_TAB, R_W, R_B1, R_W2, R_WS, R_DBG, R_OUT = 28,32,36,40,44,48,52,56
S_WAVE, S_MT, S_NT, S_M0, S_N0 = 60,61,62,63,64
S_T0, S_T1, S_T2, S_T3 = 66,67,68,69
S_STAMP = 72
S_M0X, S_M0W, S_SOFW, S_PF = 96, 97, 98, 99

def srd(r, base, nbytes):
    A(f's_mov_b32 {s(r)}, {s(base)}')
    A(f's_and_b32 {s(r+1)}, {s(base+1)}, 0xffff')
    A(f's_mov_b32 {s(r+2)}, {nbytes}')
    A(f's_mov_b32 {s(r+3)}, 0x20000')

def stamp(i):
    if OPT['stamps'] and not (OPT['cyc'] and i in (4,6)):
        A(f's_memrealtime {s(S_STAMP+2*i,2)}')

def stamp_flush(vt):
    if not OPT['stamps']: return
    A('s_waitcnt lgkmcnt(0)')
    A(f's_lshl_b32 {s(S_T0)}, s2, 3')
    A(f's_add_u32 {s(S_T0)}, {s(S_T0)}, {s(S_WAVE)}')
    A(f's_mul_i32 {s(S_T0)}, {s(S_T0)}, {NSTAMP*8}')
    A(f's_add_u32 {s(S_T0)}, {s(S_T0)}, {STAMP_OFF}')
    A(f'v_mov_b32 {v(vt+2)}, 0')
    for i in range(NSTAMP):
        A(f'v_mov_b32 {v(vt)}, {s(S_STAMP+2*i)}')
        A(f'v_mov_b32 {v(vt+1)}, {s(S_STAMP+2*i+1)}')
        A(f'buffer_store_dwordx2 {v(vt,2)}, {v(vt+2)}, {s(R_WS,4)}, {s(S_T0)} offen offset:{8*i}')
        A('s_nop 1')
    A('s_waitcnt vmcnt(0)')

A('s_cmp_ge_u32 s2, 256')
A('s_cbranch_scc1 L_end')
if OPT['stamps']:
    for i in range(NSTAMP): A(f's_mov_b64 {s(S_STAMP+2*i,2)}, 0')
stamp(0)
A(f's_load_dwordx16 {s(4,16)}, s[0:1], 0')
A(f's_load_dwordx4 {s(20,4)}, s[0:1], 64')
A(f's_load_dwordx2 {s(24,2)}, s[0:1], 80')
A('v_lshrrev_b32 v1, 6, v0')
A('v_and_b32 v0, 63, v0')
A(f'v_readfirstlane_b32 {s(S_WAVE)}, v1')
A(f's_and_b32 {s(S_T0)}, s2, 7')
A(f's_lshr_b32 {s(S_T1)}, s2, 3')
A('s_waitcnt lgkmcnt(0)')
srd(R_IDX, S_IDX, 1024*26*4)
srd(R_TAB, S_TAB, 100000*256)
srd(R_W, S_W1, 3328*3328*2)
srd(R_B1, S_B1, 3328*2)
srd(R_W2, S_W2, 3328*2)
srd(R_WS, S_WS, 268435456)
srd(R_DBG, S_DBG, 256)
srd(R_OUT, S_OUT, 2048)
A(f's_cmp_lt_u32 {s(S_T1)}, 6')
A('s_cbranch_scc1 L_cin')
A(f's_sub_u32 {s(S_T1)}, {s(S_T1)}, 6')
if OPT['mapping'] == 'n':
    A(f's_mul_i32 {s(S_T0)}, {s(S_T0)}, 26')
    A(f's_add_u32 {s(S_T0)}, {s(S_T0)}, {s(S_T1)}')
    A(f's_lshr_b32 {s(S_NT)}, {s(S_T0)}, 3')
    A(f's_and_b32 {s(S_MT)}, {s(S_T0)}, 7')
elif OPT['mapping'] == 'mn':
    A(f's_lshr_b32 {s(S_T2)}, {s(S_T0)}, 1')
    A(f's_mul_i32 {s(S_T2)}, {s(S_T2)}, 26')
    A(f's_add_u32 {s(S_T2)}, {s(S_T2)}, {s(S_T1)}')
    A(f's_lshr_b32 {s(S_NT)}, {s(S_T2)}, 2')
    A(f's_and_b32 {s(S_T2)}, {s(S_T2)}, 3')
    A(f's_and_b32 {s(S_T0)}, {s(S_T0)}, 1')
    A(f's_lshl_b32 {s(S_T0)}, {s(S_T0)}, 2')
    A(f's_add_u32 {s(S_MT)}, {s(S_T0)}, {s(S_T2)}')
A(f's_lshl_b32 {s(S_M0)}, {s(S_MT)}, 7')
A(f's_lshl_b32 {s(S_N0)}, {s(S_NT)}, 7')
A(f's_cmp_ge_u32 {s(S_WAVE)}, 4')
A('s_cbranch_scc1 L_loader')

V_ACC = 16
V_FR = 80
V_AX = 144
V_AW = 156
V_W2 = 168
V_TMP = 200
V_PF = 250
NH = (NS+1)//2
NT = 2 if SH == 32 else 4
AR = 16 if SH == 32 else 4
NSUB = 4 if SH == 32 else 2
FS = NT*2*4
def acc(nt, mt): return V_ACC + (nt*NT+mt)*AR
def frW(p, nt): return V_FR + p*FS + nt*4
def frX(p, mt): return V_FR + p*FS + NT*4 + mt*4

A(f's_and_b32 {s(S_T0)}, {s(S_WAVE)}, 1')
A(f's_lshr_b32 {s(S_T1)}, {s(S_WAVE)}, 1')
if OPT['pf']:
    A('v_lshrrev_b32 v1, 1, v0')
    A('v_mul_u32_u24 v1, 6656, v1')
    A('v_and_b32 v2, 1, v0')
    A(f'v_lshl_add_u32 {v(V_PF)}, v2, 7, v1')
    A(f's_mul_i32 {s(S_PF)}, {s(S_MT)}, {32*6656}')
    A(f's_lshl_b32 {s(S_T2)}, {s(S_N0)}, 1')
    A(f's_add_u32 {s(S_PF)}, {s(S_PF)}, {s(S_T2)}')
    A(f's_add_u32 {s(S_T2)}, {s(S_WAVE)}, 1')
    A(f's_mul_i32 {s(S_T2)}, {s(S_T2)}, {256*6656}')
    A(f's_add_u32 {s(S_T3)}, {s(S_PF)}, {s(S_T2)}')
    A(f's_cmp_ge_u32 {s(S_WAVE)}, {OPT["pf0"]}')
    A('s_cbranch_scc1 L_nopf0')
    A(f'buffer_load_dword {v(V_PF+1)}, {v(V_PF)}, {s(R_W,4)}, {s(S_T3)} offen {PFF}')
    A.label('L_nopf0')
    A(f's_lshl_b32 {s(S_T2)}, {s(S_WAVE)}, 5')
    A(f's_add_u32 {s(S_T2)}, {s(S_T2)}, {s(S_M0)}')
    A(f's_mul_i32 {s(S_T2)}, {s(S_T2)}, 26')
    A(f's_add_u32 {s(S_T2)}, {s(S_T2)}, {s(S_NT)}')
    A(f's_lshl_b32 {s(S_T2)}, {s(S_T2)}, 2')
    A('v_lshrrev_b32 v1, 1, v0')
    A('v_mul_u32_u24 v1, 104, v1')
    A(f'buffer_load_dword v8, v1, {s(R_IDX,4)}, {s(S_T2)} offen')
    A(f's_add_u32 {s(S_PF)}, {s(S_PF)}, {(OPT["pf0"]+1)*256*6656}')
A(f's_lshl_b32 {s(S_T2)}, {s(S_T0)}, 6')
A(f's_add_u32 {s(S_T2)}, {s(S_T2)}, {s(S_N0)}')
A(f's_lshl_b32 {s(S_T2)}, {s(S_T2)}, 1')
if SH == 32:
    A(f'v_lshrrev_b32 v1, 5, v0')
    quads = [(nt, rq, (32*nt+8*rq)*2) for nt in range(2) for rq in range(4)]
else:
    A(f'v_lshrrev_b32 v1, 4, v0')
    quads = [(nt, 0, 16*nt*2) for nt in range(4)]
A(f'v_lshlrev_b32 v2, 3, v1')
for i,(nt,rq,off) in enumerate(quads):
    A(f'buffer_load_dwordx2 {v(V_TMP+i*2,2)}, v2, {s(R_B1,4)}, {s(S_T2)} offen offset:{off}')
for i,(nt,rq,off) in enumerate(quads):
    A(f'buffer_load_dwordx2 {v(V_TMP+16+i*2,2)}, v2, {s(R_W2,4)}, {s(S_T2)} offen offset:{off}')
nq = len(quads)
RM = 31 if SH == 32 else 15
A(f'v_and_b32 v3, {RM}, v0')
A(f's_lshl_b32 {s(S_T3)}, {s(S_T1)}, 13')
A('v_lshlrev_b32 v4, 7, v3')
A(f'v_add_u32 v4, {s(S_T3)}, v4')
A('v_bfe_u32 v5, v3, 1, 3')
for sub in range(NSUB):
    A(f'v_or_b32 v6, {(8//NSUB)*sub}, v1')
    A('v_xor_b32 v6, v6, v5')
    A(f'v_lshl_add_u32 {v(V_AX+sub)}, v6, 4, v4')
    for hh in range(1, NH):
        A(f'v_add_u32 {v(V_AX+hh*NSUB+sub)}, {hh*65536}, {v(V_AX+sub)}')
A('v_bfe_u32 v3, v0, 2, 2')
A('v_lshlrev_b32 v4, 3, v1')
A('v_add_u32 v4, v4, v3')
A('v_lshlrev_b32 v4, 8, v4')
A('v_and_b32 v5, 1, v0')
A('v_lshl_add_u32 v4, v5, 3, v4')
A('v_add_u32 v4, 16384, v4')
if SH == 32:
    A('v_bfe_u32 v5, v0, 4, 1')
    A('v_bfe_u32 v6, v0, 1, 1')
    A('v_lshl_add_u32 v5, v5, 1, v6')
    A(f's_lshl_b32 {s(S_T2)}, {s(S_T0)}, 1')
    for nt in range(2):
        A(f's_add_u32 {s(S_T3)}, {s(S_T2)}, {nt}')
        A(f'v_xor_b32 v6, {s(S_T3)}, v3')
        A('v_lshl_add_u32 v6, v6, 2, v5')
        A(f'v_lshl_add_u32 {v(V_AW+nt)}, v6, 4, v4')
        for hh in range(1, NH):
            A(f'v_add_u32 {v(V_AW+hh*NT+nt)}, {hh*65536}, {v(V_AW+nt)}')
else:
    A('v_bfe_u32 v5, v0, 4, 1')
    A('v_lshl_add_u32 v3, v5, 2, v3')
    A('v_bfe_u32 v5, v0, 1, 1')
    A(f's_lshl_b32 {s(S_T2)}, {s(S_T0)}, 2')
    for nt in range(4):
        A(f's_add_u32 {s(S_T3)}, {s(S_T2)}, {nt}')
        A(f'v_xor_b32 v6, {s(S_T3)}, v3')
        A('v_lshl_add_u32 v6, v6, 1, v5')
        A(f'v_lshl_add_u32 {v(V_AW+nt)}, v6, 4, v4')
        for hh in range(1, NH):
            A(f'v_add_u32 {v(V_AW+hh*NT+nt)}, {hh*65536}, {v(V_AW+nt)}')
if OPT['pf']:
    A(f's_waitcnt vmcnt({2*nq})')
    A('v_and_b32 v9, 1, v0')
    A('v_lshlrev_b32 v9, 7, v9')
    A('v_lshl_add_u32 v8, v8, 8, v9')
    A(f'buffer_load_dword {v(V_PF+2)}, v8, {s(R_TAB,4)}, 0 offen {PFF}')
x_ = 1 if OPT['pf'] else 0
A(f's_waitcnt vmcnt({nq+x_})')
for i,(nt,rq,off) in enumerate(quads):
    for dd in range(2):
        src = V_TMP + i*2 + dd
        r = rq*4 + dd*2
        for mt in range(NT):
            A(f'v_lshlrev_b32 {v(acc(nt,mt)+r)}, 16, {v(src)}')
            A(f'v_and_b32 {v(acc(nt,mt)+r+1)}, 0xffff0000, {v(src)}')
A(f's_waitcnt vmcnt({x_})')
for i,(nt,rq,off) in enumerate(quads):
    for dd in range(2):
        src = V_TMP + 16 + i*2 + dd
        r = rq*4 + dd*2
        A(f'v_lshlrev_b32 {v(V_W2+nt*AR+r)}, 16, {v(src)}')
        A(f'v_and_b32 {v(V_W2+nt*AR+r+1)}, 0xffff0000, {v(src)}')

KS = 64//NSUB
def reads(p, slot, sub):
    hh, lo = slot//2, (slot%2)*SLOT
    def wr(nt,u): return (('W',nt), f'ds_read_b64_tr_b16 {v(frW(p,nt)+2*u,2)}, {v(V_AW+hh*NT+nt)} offset:{lo + 256*KS*sub + 1024*u}')
    def xr(mt): return (('X',mt), f'ds_read_b128 {v(frX(p,mt),4)}, {v(V_AX+hh*NSUB+sub)} offset:{lo + 128*SH*mt}')
    if SH == 32: return [wr(0,0), wr(0,1), xr(0), xr(1), wr(1,0), wr(1,1)]
    return [wr(0,0), wr(0,1), xr(0), xr(1), xr(2), xr(3), wr(1,0), wr(1,1), wr(2,0), wr(2,1), wr(3,0), wr(3,1)]
def mfma_order():
    o = []
    for nt in range(NT):
        ms = list(range(NT))
        if OPT['snake'] and nt % 2 == 1: ms = ms[::-1]
        for mt in ms: o.append((nt, mt))
    return o
def mf(p, nt, mt):
    if OPT['nomfma']: return 's_nop 0'
    op = 'v_mfma_f32_32x32x16_bf16' if SH == 32 else 'v_mfma_f32_16x16x32_bf16'
    return f'{op} {v(acc(nt,mt),AR)}, {v(frW(p,nt),4)}, {v(frX(p,mt),4)}, {v(acc(nt,mt),AR)}'

lq = []
def substep(p, nxt, extra=None):
    order = mfma_order()
    n = len(order)
    nxt = nxt or []
    span = n - 1 if SH == 32 else n - 4
    pos = {}
    for i, r_ in enumerate(nxt): pos.setdefault(i*span//len(nxt), []).append(r_)
    for i, (nt, mt) in enumerate(order):
        need = [(p,'W',nt), (p,'X',mt)]
        last = max([j for j,x in enumerate(lq) if x in need], default=-1)
        if last >= 0:
            A(f's_waitcnt lgkmcnt({len(lq)-1-last})')
            del lq[:last+1]
        A(mf(p, nt, mt))
        for tag, ins in pos.get(i, []):
            A(ins); lq.append((1-p,)+tag)
        if extra and i == 1:
            for e in extra: A(e)

stamp(1)
A('s_barrier')
stamp(2)
if OPT['cyc']: A(f's_memtime {s(S_STAMP+2*4,2)}')
if OPT['stamps']: A('s_waitcnt lgkmcnt(0)')
for tag, ins in reads(0, 0, 0): A(ins); lq.append((0,)+tag)
lq0 = list(lq)
UNR = NS
NIT = (NST-1) // UNR
REM = NST - NIT*UNR
A(f's_mov_b32 {s(S_T0)}, 0')
p = 0
def stage(st, last=False):
    global p
    for sub in range(NSUB-1):
        substep(p, reads(1-p, st % NS, sub+1)); p = 1-p
    if last:
        substep(p, None); return
    A('s_waitcnt lgkmcnt(0)'); lq.clear()
    A('s_barrier')
    substep(p, reads(1-p, (st+1) % NS, 0), extra_tail if st == UNR-1 and in_loop else None); p = 1-p
A.label('L_mloop')
in_loop = True
extra_tail = [f's_add_u32 {s(S_T0)}, {s(S_T0)}, 1', f's_cmp_lg_u32 {s(S_T0)}, {NIT}']
for st in range(UNR): stage(st)
assert lq == lq0 and p == 0, (lq, lq0)
A('s_cbranch_scc1 L_mloop')
in_loop = False
for st in range(REM): stage(st, last=(st == REM-1))
stamp(3)
if OPT['cyc']: A(f's_memtime {s(S_STAMP+2*6,2)}')
C0 = -2.0*math.sqrt(2.0/math.pi)*math.log2(math.e)
C1 = C0*0.044715
VC1 = V_TMP; VS = [V_TMP+1+i for i in range(NT)]; T = V_TMP+8
A(f'v_mov_b32 {v(VC1)}, {f32(C1)}')
for i in range(NT): A(f'v_mov_b32 {v(VS[i])}, 0')
A('s_nop 7'); A('s_nop 3')
if not OPT['noepi']:
    G = 8
    for mt in range(NT):
        el = [(acc(nt,mt)+r, V_W2+nt*AR+r) for nt in range(NT) for r in range(AR)]
        for g0 in range(0, len(el), G):
            xs = [e[0] for e in el[g0:g0+G]]; ws = [e[1] for e in el[g0:g0+G]]
            ts = [T+i for i in range(G)]
            for x,t in zip(xs,ts): A(f'v_mul_f32 {v(t)}, {v(x)}, {v(x)}')
            for x,t in zip(xs,ts): A(f'v_fmaak_f32 {v(t)}, {v(VC1)}, {v(t)}, {f32(C0)}')
            for x,t in zip(xs,ts): A(f'v_mul_f32 {v(t)}, {v(x)}, {v(t)}')
            for x,t in zip(xs,ts): A(f'v_exp_f32 {v(t)}, {v(t)}')
            for x,w in zip(xs,ws): A(f'v_mul_f32 {v(x)}, {v(x)}, {v(w)}')
            for x,t in zip(xs,ts): A(f'v_add_f32 {v(t)}, 1.0, {v(t)}')
            for x,t in zip(xs,ts): A(f'v_rcp_f32 {v(t)}, {v(t)}')
            A('s_nop 0')
            for x,t in zip(xs,ts): A(f'v_fmac_f32 {v(VS[mt])}, {v(x)}, {v(t)}')
A('s_nop 1')
if SH == 32:
    A(f'v_permlane32_swap_b32 {v(VS[0])}, {v(VS[1])}')
    A('s_nop 1')
    A(f'v_add_f32 {v(VS[0])}, {v(VS[0])}, {v(VS[1])}')
else:
    A(f'v_permlane32_swap_b32 {v(VS[0])}, {v(VS[2])}')
    A(f'v_permlane32_swap_b32 {v(VS[1])}, {v(VS[3])}')
    A('s_nop 1')
    A(f'v_add_f32 {v(VS[0])}, {v(VS[0])}, {v(VS[2])}')
    A(f'v_add_f32 {v(VS[1])}, {v(VS[1])}, {v(VS[3])}')
    A('s_nop 1')
    A(f'v_permlane16_swap_b32 {v(VS[0])}, {v(VS[1])}')
    A('s_nop 1')
    A(f'v_add_f32 {v(VS[0])}, {v(VS[0])}, {v(VS[1])}')
A(f's_and_b32 {s(S_T0)}, {s(S_WAVE)}, 1')
A(f's_lshr_b32 {s(S_T1)}, {s(S_WAVE)}, 1')
A(f's_lshl_b32 {s(S_T2)}, {s(S_NT)}, 1')
A(f's_add_u32 {s(S_T2)}, {s(S_T2)}, {s(S_T0)}')
A(f's_lshl_b32 {s(S_T2)}, {s(S_T2)}, 10')
A(f's_lshl_b32 {s(S_T1)}, {s(S_T1)}, 6')
A(f's_add_u32 {s(S_T2)}, {s(S_T2)}, {s(S_T1)}')
A(f's_add_u32 {s(S_T2)}, {s(S_T2)}, {s(S_M0)}')
A(f's_lshl_b32 {s(S_T2)}, {s(S_T2)}, 2')
A('v_lshlrev_b32 v1, 2, v0')
A(f'buffer_store_dword {v(VS[0])}, v1, {s(R_WS,4)}, {s(S_T2)} offen sc1')
stamp(4)
A('s_waitcnt vmcnt(0)')
A('s_branch L_join')

A.label('L_loader')
V_IX = 16
NIX = 4
V_OW = 8
V_IA = 10
S_FI, S_FW, S_IB, S_OFF, S_WK = 26, 27, 65, 70, 71
S_GS = 100
WIN = OPT['win']
A(f's_sub_u32 {s(S_T0)}, {s(S_WAVE)}, 4')
A(f's_lshl_b32 {s(S_T1)}, {s(S_T0)}, 5')
A(f's_add_u32 {s(S_T1)}, {s(S_T1)}, {s(S_M0)}')
A(f's_mul_i32 {s(S_IB)}, {s(S_T1)}, 104')
A('v_lshrrev_b32 v1, 3, v0')
A('v_mul_u32_u24 v1, 104, v1')
if OPT['rot']:
    A(f's_add_u32 {s(S_OFF)}, {s(S_NT)}, {s(S_MT)}')
    A(f's_and_b32 {s(S_OFF)}, {s(S_OFF)}, 3')
    if WIN != 4: A(f's_mul_i32 {s(S_OFF)}, {s(S_OFF)}, {WIN//4}')
else:
    A(f's_mov_b32 {s(S_OFF)}, 0')
q_ = []
def field(sreg, j):
    w = j // WIN; wl = min(WIN, 26 - w*WIN)
    assert wl & (wl-1) == 0
    A(f's_add_u32 {s(sreg)}, {s(S_OFF)}, {j % WIN}')
    A(f's_and_b32 {s(sreg)}, {s(sreg)}, {wl-1}')
    A(f's_add_u32 {s(sreg)}, {s(sreg)}, {w*WIN}')
field(S_FI, 0)
A(f's_lshl2_add_u32 {s(S_T3)}, {s(S_FI)}, {s(S_IB)}')
for q in range(4):
    A(f'buffer_load_dword {v(V_IX+q)}, v1, {s(R_IDX,4)}, {s(S_T3)} offen offset:{q*8*104}'); q_.append(('idx', 0))
A('v_lshrrev_b32 v2, 4, v0')
A('v_and_b32 v3, 15, v0')
A(f'v_lshlrev_b32 v4, {2 if SH == 32 else 1}, v2')
A('v_xor_b32 v3, v3, v4')
A('v_mul_u32_u24 v4, 6656, v2')
A(f'v_lshl_add_u32 {v(V_OW)}, v3, 4, v4')
if SH == 32: A(f'v_mov_b32 {v(V_OW+1)}, {v(V_OW)}')
else:
    A('v_xor_b32 v3, 8, v3')
    A(f'v_lshl_add_u32 {v(V_OW+1)}, v3, 4, v4')
A(f's_mul_i32 {s(S_SOFW)}, {s(S_T0)}, {16*6656}')
A(f's_lshl_b32 {s(S_T1)}, {s(S_N0)}, 1')
A(f's_add_u32 {s(S_SOFW)}, {s(S_SOFW)}, {s(S_T1)}')
A(f's_lshl_b32 {s(S_M0X)}, {s(S_T0)}, 12')
A(f's_add_u32 {s(S_M0W)}, {s(S_M0X)}, 16384')
A('v_lshlrev_b32 v6, 4, v0')
A(f's_add_u32 m0, {s(S_M0X)}, {IDXLDS}')
A(f's_add_u32 {s(S_T1)}, {s(S_M0X)}, {IDXLDS}')
for q in range(4):
    A(f'buffer_load_dwordx4 v6, {s(R_IDX,4)}, {s(S_IB)} offen offset:{q*1024} lds'); q_.append(('idxd', 0))
A(f'v_add_u32 {v(V_IA)}, {s(S_T1)}, v1')
def issueW(t):
    sl = (t % NS)*SLOT
    if t % 2 == 0:
        field(S_FW, t//2)
        A(f's_mul_i32 {s(S_WK)}, {s(S_FW)}, {128*6656}')
        A(f's_add_u32 {s(S_WK)}, {s(S_WK)}, {s(S_SOFW)}')
    for q in range(4):
        A(f's_add_u32 m0, {s(S_M0W)}, {sl + q*1024}')
        A(f's_add_u32 {s(S_T1)}, {s(S_WK)}, {((t&1)*64 + q*4)*6656}')
        A(f'buffer_load_dwordx4 {v(V_OW+(q>>1))}, {s(R_W,4)}, {s(S_T1)} offen {OPT.get("wflag","").replace("+"," ")} lds'); q_.append(('W',t))
def idxread(j):
    field(S_FI, j)
    A(f's_lshl_b32 {s(S_FI)}, {s(S_FI)}, 2')
    A(f'v_add_u32 v7, {s(S_FI)}, {v(V_IA)}')
    for q in range(4):
        A(f'ds_read_b32 {v(V_IX+4*(j%NIX)+q)}, v7 offset:{q*8*104}')
def issueX(t):
    sl = (t % NS)*SLOT
    j = t//2
    if t % 2 == 0:
        if j > 0: A('s_waitcnt lgkmcnt(0)')
        for q in range(4):
            r = V_IX+4*(j%NIX)+q
            A(f'v_lshl_add_u32 {v(r)}, {v(r)}, 8, {v(4 + (q&1))}')
    A(f's_mov_b32 {s(S_T1)}, {(t&1)*128}')
    for q in range(4):
        A(f's_add_u32 m0, {s(S_M0X)}, {sl + q*1024}')
        A('s_nop 0')
        A(f'buffer_load_dwordx4 {v(V_IX+4*(j%NIX)+q)}, {s(R_TAB,4)}, {s(S_T1)} offen {OPT.get("xflag","").replace("+"," ")} lds'); q_.append(('X',t))
    if t % 2 == 0 and j+1 < 26: idxread(j+1)
def waitfor(pred):
    last = max([i for i,x in enumerate(q_) if pred(x)], default=-1)
    n = len(q_) - 1 - last
    assert n <= 63
    A(f's_waitcnt vmcnt({n})')
    del q_[:last+1]
A('v_and_b32 v3, 7, v0')
A('v_xor_b32 v4, v3, v2')
A('v_lshlrev_b32 v4, 4, v4')
A('v_xor_b32 v5, 64, v4')
issueW(0)
waitfor(lambda x: x[0].startswith('idx'))
stamp(1)
if OPT['stamps']: A('s_waitcnt lgkmcnt(0)')
issueX(0)
issueW(1); issueX(1)
waitfor(lambda x: x[1] <= 0)
stamp(2)
A('s_barrier')
for t in range(2, NS): issueW(t); issueX(t)
for t in range(NST-1):
    waitfor(lambda x: x[1] <= t+1)
    A('s_barrier')
    if t in (3,11,19,27,35,43) and OPT['stamps']: A(f's_memrealtime {s(S_STAMP+2*{3:4,11:6,19:7,27:8,35:9,43:10}[t],2)}')
    if t+NS < NST and not OPT['noload']:
        issueW(t+NS); issueX(t+NS)
stamp(3)
A.label('L_join')
A('s_barrier')
stamp(5)
A(f's_cmp_lg_u32 {s(S_WAVE)}, 0')
A('s_cbranch_scc1 L_fin')
A(f's_lshl_b32 {s(S_T0)}, {s(S_MT)}, 2')
A('v_mov_b32 v1, 0')
A('v_mov_b32 v2, 1')
A('s_mov_b64 exec, 1')
A(f'buffer_atomic_add v2, v1, {s(R_DBG,4)}, {s(S_T0)} offen sc0')
A('s_waitcnt vmcnt(0)')
A('s_mov_b64 exec, -1')
A(f'v_readfirstlane_b32 {s(S_T1)}, v2')
stamp(6)
A(f's_cmp_lg_u32 {s(S_T1)}, {NARR-1}')
A('s_cbranch_scc1 L_fin')
A('v_lshlrev_b32 v1, 3, v0')
A(f's_lshl_b32 {s(S_T0)}, {s(S_M0)}, 2')
A(f's_load_dword {s(S_T2)}, {s(S_BO,2)}, 0')
for r in range(NROWS):
    A(f'buffer_load_dwordx2 {v(16+2*r,2)}, v1, {s(R_WS,4)}, {s(S_T0)} offen sc1')
    A(f's_add_u32 {s(S_T0)}, {s(S_T0)}, 4096')
A('s_waitcnt lgkmcnt(0)')
A(f's_lshl_b32 {s(S_T2)}, {s(S_T2)}, 16')
A(f'v_mov_b32 v2, {s(S_T2)}')
A(f'v_mov_b32 v3, {s(S_T2)}')
for r in range(NROWS):
    A(f's_waitcnt vmcnt({NROWS-1-r})')
    A(f'v_add_f32 v2, v2, {v(16+2*r)}')
    A(f'v_add_f32 v3, v3, {v(17+2*r)}')
A('v_cvt_pk_bf16_f32 v2, v2, v3')
A('v_lshlrev_b32 v1, 2, v0')
A(f's_lshl_b32 {s(S_T0)}, {s(S_M0)}, 1')
A(f'buffer_store_dword v2, v1, {s(R_OUT,4)}, {s(S_T0)} offen')
A.label('L_fin')
stamp(11)
stamp_flush(4)
A('s_endpgm')
A.label('L_cin')
if OPT['cpf']:
    PFW = OPT['pfw']
    A(f's_cmp_lg_u32 {s(S_WAVE)}, 0')
    A('s_cbranch_scc1 L_end')
    A(f's_lshl_b32 {s(S_T1)}, {s(S_T1)}, 3')
    A(f's_add_u32 {s(S_T0)}, {s(S_T0)}, {s(S_T1)}')
    A(f's_cmp_ge_u32 {s(S_T0)}, {PFW}')
    A('s_cbranch_scc1 L_pfx')
    A('v_lshlrev_b32 v2, 7, v0')
    A(f's_add_u32 {s(S_T0)}, {s(S_T0)}, {OPT["cpfskip"]}')
    A(f's_lshl_b32 {s(S_T0)}, {s(S_T0)}, 13')
    A.label('L_pfw')
    for i in range(4):
        A(f'buffer_load_dword {v(16+i)}, v2, {s(R_W,4)}, {s(S_T0)} offen {PFF}')
        A(f's_add_u32 {s(S_T0)}, {s(S_T0)}, {PFW*8192}')
    A('s_waitcnt vmcnt(32)')
    A(f's_cmp_lt_u32 {s(S_T0)}, {3328*3328*2}')
    A('s_cbranch_scc1 L_pfw')
    stamp(2)
    A('s_waitcnt vmcnt(0)')
    A('s_branch L_fin')
    A.label('L_pfx')
    A(f's_sub_u32 {s(S_T0)}, {s(S_T0)}, {PFW}')
    A(f's_mul_i32 {s(S_T0)}, {s(S_T0)}, {64*104}')
    A('v_mul_u32_u24 v1, 104, v0')
    for c in range(6): A(f'buffer_load_dwordx4 {v(16+4*c,4)}, v1, {s(R_IDX,4)}, {s(S_T0)} offen offset:{16*c}')
    A(f'buffer_load_dwordx2 {v(40,2)}, v1, {s(R_IDX,4)}, {s(S_T0)} offen offset:96')
    A('s_waitcnt vmcnt(0)')
    stamp(1)
    for f in range(OPT['cpfskip']//104, 26):
        A(f'v_lshlrev_b32 {v(16+f)}, 8, {v(16+f)}')
        A(f'buffer_load_dword v50, {v(16+f)}, {s(R_TAB,4)}, 0 offen {PFF}')
        A(f'buffer_load_dword v51, {v(16+f)}, {s(R_TAB,4)}, 0 offen offset:128 {PFF}')
    stamp(2)
    A('s_waitcnt vmcnt(0)')
    A('s_branch L_fin')
A('s_endpgm')
A.label('L_end')
A('s_endpgm')

open(sys.argv[1], 'w').write(wrap(A.text(), 256, 512, LDS_BYTES))
```

```python
import sys, math, struct
from asmlib import *

def f32(x): return '0x%08x' % struct.unpack('<I', struct.pack('<f', x))[0]

OPT = dict(stamps=0, nomfma=0, nocin=1, ns=4, mapping='n', noepi=0, noload=0, cyc=0, l2test=0,
           rot=1, win=4, gshift=0, pfw=32, cpf=0, cpfskip=208, shape=16, pf=0, pfflag='', pf0=2, snake=1)
for a_ in sys.argv[2:]:
    k_, v_ = a_.split('='); OPT[k_] = int(v_) if v_.lstrip('-').isdigit() else v_
NS = OPT['ns']
NST = 52
SLOT = 32768
LDS_BYTES = NS*SLOT + 16384
IDXLDS = NS*SLOT
STAMP_OFF = 1 << 20
NSTAMP = 12
NARR = 26 + (0 if OPT['nocin'] else 6)
NROWS = 52 + (0 if OPT['nocin'] else 4)
SH = OPT['shape']
PFF = OPT['pfflag'].replace('+', ' ')

A = Asm()
S_IDX, S_TAB, S_WCIN, S_WCO, S_W1, S_B1, S_W2, S_BO, S_OUT, S_DBG, S_WS = 4,6,8,10,12,14,16,18,20,22,24
R_IDX, R_TAB, R_W, R_B1, R_W2, R_WS, R_DBG, R_OUT = 28,32,36,40,44,48,52,56
S_WAVE, S_MT, S_NT, S_M0, S_N0 = 60,61,62,63,64
S_T0, S_T1, S_T2, S_T3 = 66,67,68,69
S_STAMP = 72
S_M0X, S_M0W, S_SOFW, S_PF = 96, 97, 98, 99

def srd(r, base, nbytes):
    A(f's_mov_b32 {s(r)}, {s(base)}')
    A(f's_and_b32 {s(r+1)}, {s(base+1)}, 0xffff')
    A(f's_mov_b32 {s(r+2)}, {nbytes}')
    A(f's_mov_b32 {s(r+3)}, 0x20000')

def stamp(i):
    if OPT['stamps'] and not (OPT['cyc'] and i in (4,6)):
        A(f's_memrealtime {s(S_STAMP+2*i,2)}')

def stamp_flush(vt):
    if not OPT['stamps']: return
    A('s_waitcnt lgkmcnt(0)')
    if OPT['stamps'] == 2:
        A(f'v_mov_b32 {v(vt+2)}, 0')
        A('s_mov_b64 exec, 1')
        A('s_cmp_lt_u32 s2, 48')
        A('s_cbranch_scc1 L_dbgcin')
        for w_, i in ((8,0),(9,2),(10,3),(11,5),(15,11)):
            A(f'v_mov_b32 {v(vt)}, {s(S_STAMP+2*i)}')
            A(f'buffer_atomic_umax {v(vt)}, {v(vt+2)}, {s(R_DBG,4)}, 0 offen offset:{4*w_}')
            A('s_nop 1')
        A('s_branch L_dbgdone')
        A.label('L_dbgcin')
        for w_, i in ((12,1),(13,8),(14,5),(15,11)):
            A(f'v_mov_b32 {v(vt)}, {s(S_STAMP+2*i)}')
            A(f'buffer_atomic_umax {v(vt)}, {v(vt+2)}, {s(R_DBG,4)}, 0 offen offset:{4*w_}')
            A('s_nop 1')
        A.label('L_dbgdone')
        A('s_waitcnt vmcnt(0)')
        return
    A(f's_lshl_b32 {s(S_T0)}, s2, 3')
    A(f's_add_u32 {s(S_T0)}, {s(S_T0)}, {s(S_WAVE)}')
    A(f's_mul_i32 {s(S_T0)}, {s(S_T0)}, {NSTAMP*8}')
    A(f's_add_u32 {s(S_T0)}, {s(S_T0)}, {STAMP_OFF}')
    A(f'v_mov_b32 {v(vt+2)}, 0')
    for i in range(NSTAMP):
        A(f'v_mov_b32 {v(vt)}, {s(S_STAMP+2*i)}')
        A(f'v_mov_b32 {v(vt+1)}, {s(S_STAMP+2*i+1)}')
        A(f'buffer_store_dwordx2 {v(vt,2)}, {v(vt+2)}, {s(R_WS,4)}, {s(S_T0)} offen offset:{8*i}')
        A('s_nop 1')
    A('s_waitcnt vmcnt(0)')

A('s_cmp_ge_u32 s2, 256')
A('s_cbranch_scc1 L_end')
if OPT['stamps']:
    for i in range(NSTAMP): A(f's_mov_b64 {s(S_STAMP+2*i,2)}, 0')
stamp(0)
A(f's_load_dwordx16 {s(4,16)}, s[0:1], 0')
A(f's_load_dwordx4 {s(20,4)}, s[0:1], 64')
A(f's_load_dwordx2 {s(24,2)}, s[0:1], 80')
A('v_lshrrev_b32 v1, 6, v0')
A('v_and_b32 v0, 63, v0')
A(f'v_readfirstlane_b32 {s(S_WAVE)}, v1')
A(f's_and_b32 {s(S_T0)}, s2, 7')
A(f's_lshr_b32 {s(S_T1)}, s2, 3')
A('s_waitcnt lgkmcnt(0)')
srd(R_IDX, S_IDX, 1024*26*4)
srd(R_TAB, S_TAB, 100000*256)
srd(R_W, S_W1, 3328*3328*2)
srd(R_B1, S_B1, 3328*2)
srd(R_W2, S_W2, 3328*2)
srd(R_WS, S_WS, 268435456)
srd(R_DBG, S_DBG, 256)
srd(R_OUT, S_OUT, 2048)
A(f's_cmp_lt_u32 {s(S_T1)}, 6')
A('s_cbranch_scc1 L_cin')
A(f's_sub_u32 {s(S_T1)}, {s(S_T1)}, 6')
if OPT['mapping'] == 'n':
    A(f's_mul_i32 {s(S_T0)}, {s(S_T0)}, 26')
    A(f's_add_u32 {s(S_T0)}, {s(S_T0)}, {s(S_T1)}')
    A(f's_lshr_b32 {s(S_NT)}, {s(S_T0)}, 3')
    A(f's_and_b32 {s(S_MT)}, {s(S_T0)}, 7')
elif OPT['mapping'] == 'mn':
    A(f's_lshr_b32 {s(S_T2)}, {s(S_T0)}, 1')
    A(f's_mul_i32 {s(S_T2)}, {s(S_T2)}, 26')
    A(f's_add_u32 {s(S_T2)}, {s(S_T2)}, {s(S_T1)}')
    A(f's_lshr_b32 {s(S_NT)}, {s(S_T2)}, 2')
    A(f's_and_b32 {s(S_T2)}, {s(S_T2)}, 3')
    A(f's_and_b32 {s(S_T0)}, {s(S_T0)}, 1')
    A(f's_lshl_b32 {s(S_T0)}, {s(S_T0)}, 2')
    A(f's_add_u32 {s(S_MT)}, {s(S_T0)}, {s(S_T2)}')
A(f's_lshl_b32 {s(S_M0)}, {s(S_MT)}, 7')
A(f's_lshl_b32 {s(S_N0)}, {s(S_NT)}, 7')
A(f's_cmp_ge_u32 {s(S_WAVE)}, 4')
A('s_cbranch_scc1 L_loader')

V_ACC = 16
V_FR = 80
V_AX = 144
V_AW = 156
V_W2 = 168
V_TMP = 200
V_PF = 250
NH = (NS+1)//2
NT = 2 if SH == 32 else 4
AR = 16 if SH == 32 else 4
NSUB = 4 if SH == 32 else 2
FS = NT*2*4
def acc(nt, mt): return V_ACC + (nt*NT+mt)*AR
def frW(p, nt): return V_FR + p*FS + nt*4
def frX(p, mt): return V_FR + p*FS + NT*4 + mt*4

A(f's_and_b32 {s(S_T0)}, {s(S_WAVE)}, 1')
A(f's_lshr_b32 {s(S_T1)}, {s(S_WAVE)}, 1')
if OPT['pf']:
    A('v_lshrrev_b32 v1, 1, v0')
    A('v_mul_u32_u24 v1, 6656, v1')
    A('v_and_b32 v2, 1, v0')
    A(f'v_lshl_add_u32 {v(V_PF)}, v2, 7, v1')
    A(f's_mul_i32 {s(S_PF)}, {s(S_MT)}, {32*6656}')
    A(f's_lshl_b32 {s(S_T2)}, {s(S_N0)}, 1')
    A(f's_add_u32 {s(S_PF)}, {s(S_PF)}, {s(S_T2)}')
    A(f's_add_u32 {s(S_T2)}, {s(S_WAVE)}, 1')
    A(f's_mul_i32 {s(S_T2)}, {s(S_T2)}, {256*6656}')
    A(f's_add_u32 {s(S_T3)}, {s(S_PF)}, {s(S_T2)}')
    A(f's_cmp_ge_u32 {s(S_WAVE)}, {OPT["pf0"]}')
    A('s_cbranch_scc1 L_nopf0')
    A(f'buffer_load_dword {v(V_PF+1)}, {v(V_PF)}, {s(R_W,4)}, {s(S_T3)} offen {PFF}')
    A.label('L_nopf0')
    A(f's_lshl_b32 {s(S_T2)}, {s(S_WAVE)}, 5')
    A(f's_add_u32 {s(S_T2)}, {s(S_T2)}, {s(S_M0)}')
    A(f's_mul_i32 {s(S_T2)}, {s(S_T2)}, 26')
    A(f's_add_u32 {s(S_T2)}, {s(S_T2)}, {s(S_NT)}')
    A(f's_lshl_b32 {s(S_T2)}, {s(S_T2)}, 2')
    A('v_lshrrev_b32 v1, 1, v0')
    A('v_mul_u32_u24 v1, 104, v1')
    A(f'buffer_load_dword v8, v1, {s(R_IDX,4)}, {s(S_T2)} offen')
    A(f's_add_u32 {s(S_PF)}, {s(S_PF)}, {(OPT["pf0"]+1)*256*6656}')
A(f's_lshl_b32 {s(S_T2)}, {s(S_T0)}, 6')
A(f's_add_u32 {s(S_T2)}, {s(S_T2)}, {s(S_N0)}')
A(f's_lshl_b32 {s(S_T2)}, {s(S_T2)}, 1')
if SH == 32:
    A(f'v_lshrrev_b32 v1, 5, v0')
    quads = [(nt, rq, (32*nt+8*rq)*2) for nt in range(2) for rq in range(4)]
else:
    A(f'v_lshrrev_b32 v1, 4, v0')
    quads = [(nt, 0, 16*nt*2) for nt in range(4)]
A(f'v_lshlrev_b32 v2, 3, v1')
for i,(nt,rq,off) in enumerate(quads):
    A(f'buffer_load_dwordx2 {v(V_TMP+i*2,2)}, v2, {s(R_B1,4)}, {s(S_T2)} offen offset:{off}')
for i,(nt,rq,off) in enumerate(quads):
    A(f'buffer_load_dwordx2 {v(V_TMP+16+i*2,2)}, v2, {s(R_W2,4)}, {s(S_T2)} offen offset:{off}')
nq = len(quads)
RM = 31 if SH == 32 else 15
A(f'v_and_b32 v3, {RM}, v0')
A(f's_lshl_b32 {s(S_T3)}, {s(S_T1)}, 13')
A('v_lshlrev_b32 v4, 7, v3')
A(f'v_add_u32 v4, {s(S_T3)}, v4')
A('v_bfe_u32 v5, v3, 1, 3')
for sub in range(NSUB):
    A(f'v_or_b32 v6, {(8//NSUB)*sub}, v1')
    A('v_xor_b32 v6, v6, v5')
    A(f'v_lshl_add_u32 {v(V_AX+sub)}, v6, 4, v4')
    for hh in range(1, NH):
        A(f'v_add_u32 {v(V_AX+hh*NSUB+sub)}, {hh*65536}, {v(V_AX+sub)}')
A('v_bfe_u32 v3, v0, 2, 2')
A('v_lshlrev_b32 v4, 3, v1')
A('v_add_u32 v4, v4, v3')
A('v_lshlrev_b32 v4, 8, v4')
A('v_and_b32 v5, 1, v0')
A('v_lshl_add_u32 v4, v5, 3, v4')
A('v_add_u32 v4, 16384, v4')
if SH == 32:
    A('v_bfe_u32 v5, v0, 4, 1')
    A('v_bfe_u32 v6, v0, 1, 1')
    A('v_lshl_add_u32 v5, v5, 1, v6')
    A(f's_lshl_b32 {s(S_T2)}, {s(S_T0)}, 1')
    for nt in range(2):
        A(f's_add_u32 {s(S_T3)}, {s(S_T2)}, {nt}')
        A(f'v_xor_b32 v6, {s(S_T3)}, v3')
        A('v_lshl_add_u32 v6, v6, 2, v5')
        A(f'v_lshl_add_u32 {v(V_AW+nt)}, v6, 4, v4')
        for hh in range(1, NH):
            A(f'v_add_u32 {v(V_AW+hh*NT+nt)}, {hh*65536}, {v(V_AW+nt)}')
else:
    A('v_bfe_u32 v5, v0, 4, 1')
    A('v_lshl_add_u32 v3, v5, 2, v3')
    A('v_bfe_u32 v5, v0, 1, 1')
    A(f's_lshl_b32 {s(S_T2)}, {s(S_T0)}, 2')
    for nt in range(4):
        A(f's_add_u32 {s(S_T3)}, {s(S_T2)}, {nt}')
        A(f'v_xor_b32 v6, {s(S_T3)}, v3')
        A('v_lshl_add_u32 v6, v6, 1, v5')
        A(f'v_lshl_add_u32 {v(V_AW+nt)}, v6, 4, v4')
        for hh in range(1, NH):
            A(f'v_add_u32 {v(V_AW+hh*NT+nt)}, {hh*65536}, {v(V_AW+nt)}')
if OPT['pf']:
    A(f's_waitcnt vmcnt({2*nq})')
    A('v_and_b32 v9, 1, v0')
    A('v_lshlrev_b32 v9, 7, v9')
    A('v_lshl_add_u32 v8, v8, 8, v9')
    A(f'buffer_load_dword {v(V_PF+2)}, v8, {s(R_TAB,4)}, 0 offen {PFF}')
x_ = 1 if OPT['pf'] else 0
A(f's_waitcnt vmcnt({nq+x_})')
for i,(nt,rq,off) in enumerate(quads):
    for dd in range(2):
        src = V_TMP + i*2 + dd
        r = rq*4 + dd*2
        for mt in range(NT):
            A(f'v_lshlrev_b32 {v(acc(nt,mt)+r)}, 16, {v(src)}')
            A(f'v_and_b32 {v(acc(nt,mt)+r+1)}, 0xffff0000, {v(src)}')
A(f's_waitcnt vmcnt({x_})')
for i,(nt,rq,off) in enumerate(quads):
    for dd in range(2):
        src = V_TMP + 16 + i*2 + dd
        r = rq*4 + dd*2
        A(f'v_lshlrev_b32 {v(V_W2+nt*AR+r)}, 16, {v(src)}')
        A(f'v_and_b32 {v(V_W2+nt*AR+r+1)}, 0xffff0000, {v(src)}')

KS = 64//NSUB
def reads(p, slot, sub):
    hh, lo = slot//2, (slot%2)*SLOT
    def wr(nt,u): return (('W',nt), f'ds_read_b64_tr_b16 {v(frW(p,nt)+2*u,2)}, {v(V_AW+hh*NT+nt)} offset:{lo + 256*KS*sub + 1024*u}')
    def xr(mt): return (('X',mt), f'ds_read_b128 {v(frX(p,mt),4)}, {v(V_AX+hh*NSUB+sub)} offset:{lo + 128*SH*mt}')
    if SH == 32: return [wr(0,0), wr(0,1), xr(0), xr(1), wr(1,0), wr(1,1)]
    return [wr(0,0), wr(0,1), xr(0), xr(1), xr(2), xr(3), wr(1,0), wr(1,1), wr(2,0), wr(2,1), wr(3,0), wr(3,1)]
def mfma_order():
    o = []
    for nt in range(NT):
        ms = list(range(NT))
        if OPT['snake'] and nt % 2 == 1: ms = ms[::-1]
        for mt in ms: o.append((nt, mt))
    return o
def mf(p, nt, mt):
    if OPT['nomfma']: return 's_nop 0'
    op = 'v_mfma_f32_32x32x16_bf16' if SH == 32 else 'v_mfma_f32_16x16x32_bf16'
    return f'{op} {v(acc(nt,mt),AR)}, {v(frW(p,nt),4)}, {v(frX(p,mt),4)}, {v(acc(nt,mt),AR)}'

lq = []
def substep(p, nxt, extra=None):
    order = mfma_order()
    n = len(order)
    nxt = nxt or []
    span = n - 1 if SH == 32 else n - 4
    pos = {}
    for i, r_ in enumerate(nxt): pos.setdefault(i*span//len(nxt), []).append(r_)
    for i, (nt, mt) in enumerate(order):
        need = [(p,'W',nt), (p,'X',mt)]
        last = max([j for j,x in enumerate(lq) if x in need], default=-1)
        if last >= 0:
            A(f's_waitcnt lgkmcnt({len(lq)-1-last})')
            del lq[:last+1]
        A(mf(p, nt, mt))
        for tag, ins in pos.get(i, []):
            A(ins); lq.append((1-p,)+tag)
        if extra and i == 1:
            for e in extra: A(e)

stamp(1)
A('s_barrier')
stamp(2)
if OPT['cyc']: A(f's_memtime {s(S_STAMP+2*4,2)}')
if OPT['stamps']: A('s_waitcnt lgkmcnt(0)')
for tag, ins in reads(0, 0, 0): A(ins); lq.append((0,)+tag)
lq0 = list(lq)
UNR = NS
NIT = (NST-1) // UNR
REM = NST - NIT*UNR
A(f's_mov_b32 {s(S_T0)}, 0')
p = 0
def stage(st, last=False):
    global p
    for sub in range(NSUB-1):
        substep(p, reads(1-p, st % NS, sub+1)); p = 1-p
    if last:
        substep(p, None); return
    A('s_waitcnt lgkmcnt(0)'); lq.clear()
    A('s_barrier')
    substep(p, reads(1-p, (st+1) % NS, 0), extra_tail if st == UNR-1 and in_loop else None); p = 1-p
A.label('L_mloop')
in_loop = True
extra_tail = [f's_add_u32 {s(S_T0)}, {s(S_T0)}, 1', f's_cmp_lg_u32 {s(S_T0)}, {NIT}']
for st in range(UNR): stage(st)
assert lq == lq0 and p == 0, (lq, lq0)
A('s_cbranch_scc1 L_mloop')
in_loop = False
for st in range(REM): stage(st, last=(st == REM-1))
stamp(3)
if OPT['cyc']: A(f's_memtime {s(S_STAMP+2*6,2)}')
C0 = -2.0*math.sqrt(2.0/math.pi)*math.log2(math.e)
C1 = C0*0.044715
VC1 = V_TMP; VS = [V_TMP+1+i for i in range(NT)]; T = V_TMP+8
A(f'v_mov_b32 {v(VC1)}, {f32(C1)}')
for i in range(NT): A(f'v_mov_b32 {v(VS[i])}, 0')
A('s_nop 7'); A('s_nop 3')
if not OPT['noepi']:
    G = 8
    for mt in range(NT):
        el = [(acc(nt,mt)+r, V_W2+nt*AR+r) for nt in range(NT) for r in range(AR)]
        for g0 in range(0, len(el), G):
            xs = [e[0] for e in el[g0:g0+G]]; ws = [e[1] for e in el[g0:g0+G]]
            ts = [T+i for i in range(G)]
            for x,t in zip(xs,ts): A(f'v_mul_f32 {v(t)}, {v(x)}, {v(x)}')
            for x,t in zip(xs,ts): A(f'v_fmaak_f32 {v(t)}, {v(VC1)}, {v(t)}, {f32(C0)}')
            for x,t in zip(xs,ts): A(f'v_mul_f32 {v(t)}, {v(x)}, {v(t)}')
            for x,t in zip(xs,ts): A(f'v_exp_f32 {v(t)}, {v(t)}')
            for x,w in zip(xs,ws): A(f'v_mul_f32 {v(x)}, {v(x)}, {v(w)}')
            for x,t in zip(xs,ts): A(f'v_add_f32 {v(t)}, 1.0, {v(t)}')
            for x,t in zip(xs,ts): A(f'v_rcp_f32 {v(t)}, {v(t)}')
            A('s_nop 0')
            for x,t in zip(xs,ts): A(f'v_fmac_f32 {v(VS[mt])}, {v(x)}, {v(t)}')
A('s_nop 1')
if SH == 32:
    A(f'v_permlane32_swap_b32 {v(VS[0])}, {v(VS[1])}')
    A('s_nop 1')
    A(f'v_add_f32 {v(VS[0])}, {v(VS[0])}, {v(VS[1])}')
else:
    A(f'v_permlane32_swap_b32 {v(VS[0])}, {v(VS[2])}')
    A(f'v_permlane32_swap_b32 {v(VS[1])}, {v(VS[3])}')
    A('s_nop 1')
    A(f'v_add_f32 {v(VS[0])}, {v(VS[0])}, {v(VS[2])}')
    A(f'v_add_f32 {v(VS[1])}, {v(VS[1])}, {v(VS[3])}')
    A('s_nop 1')
    A(f'v_permlane16_swap_b32 {v(VS[0])}, {v(VS[1])}')
    A('s_nop 1')
    A(f'v_add_f32 {v(VS[0])}, {v(VS[0])}, {v(VS[1])}')
A(f's_and_b32 {s(S_T0)}, {s(S_WAVE)}, 1')
A(f's_lshr_b32 {s(S_T1)}, {s(S_WAVE)}, 1')
A(f's_lshl_b32 {s(S_T2)}, {s(S_NT)}, 1')
A(f's_add_u32 {s(S_T2)}, {s(S_T2)}, {s(S_T0)}')
A(f's_lshl_b32 {s(S_T2)}, {s(S_T2)}, 10')
A(f's_lshl_b32 {s(S_T1)}, {s(S_T1)}, 6')
A(f's_add_u32 {s(S_T2)}, {s(S_T2)}, {s(S_T1)}')
A(f's_add_u32 {s(S_T2)}, {s(S_T2)}, {s(S_M0)}')
A(f's_lshl_b32 {s(S_T2)}, {s(S_T2)}, 2')
A('v_lshlrev_b32 v1, 2, v0')
A(f'buffer_store_dword {v(VS[0])}, v1, {s(R_WS,4)}, {s(S_T2)} offen sc1')
stamp(4)
A('s_waitcnt vmcnt(0)')
A('s_branch L_join')

A.label('L_loader')
V_IX = 16
NIX = 4
V_OW = 8
V_IA = 10
S_FI, S_FW, S_IB, S_OFF, S_WK = 26, 27, 65, 70, 71
S_GS = 100
WIN = OPT['win']
A(f's_sub_u32 {s(S_T0)}, {s(S_WAVE)}, 4')
A(f's_lshl_b32 {s(S_T1)}, {s(S_T0)}, 5')
A(f's_add_u32 {s(S_T1)}, {s(S_T1)}, {s(S_M0)}')
A(f's_mul_i32 {s(S_IB)}, {s(S_T1)}, 104')
A('v_lshrrev_b32 v1, 3, v0')
A('v_mul_u32_u24 v1, 104, v1')
if OPT['rot']:
    A(f's_add_u32 {s(S_OFF)}, {s(S_NT)}, {s(S_MT)}')
    A(f's_and_b32 {s(S_OFF)}, {s(S_OFF)}, 3')
    if WIN != 4: A(f's_mul_i32 {s(S_OFF)}, {s(S_OFF)}, {WIN//4}')
else:
    A(f's_mov_b32 {s(S_OFF)}, 0')
q_ = []
def field(sreg, j):
    w = j // WIN; wl = min(WIN, 26 - w*WIN)
    assert wl & (wl-1) == 0
    A(f's_add_u32 {s(sreg)}, {s(S_OFF)}, {j % WIN}')
    A(f's_and_b32 {s(sreg)}, {s(sreg)}, {wl-1}')
    A(f's_add_u32 {s(sreg)}, {s(sreg)}, {w*WIN}')
field(S_FI, 0)
A(f's_lshl2_add_u32 {s(S_T3)}, {s(S_FI)}, {s(S_IB)}')
for q in range(4):
    A(f'buffer_load_dword {v(V_IX+q)}, v1, {s(R_IDX,4)}, {s(S_T3)} offen offset:{q*8*104}'); q_.append(('idx', 0))
A('v_lshrrev_b32 v2, 4, v0')
A('v_and_b32 v3, 15, v0')
A(f'v_lshlrev_b32 v4, {2 if SH == 32 else 1}, v2')
A('v_xor_b32 v3, v3, v4')
A('v_mul_u32_u24 v4, 6656, v2')
A(f'v_lshl_add_u32 {v(V_OW)}, v3, 4, v4')
if SH == 32: A(f'v_mov_b32 {v(V_OW+1)}, {v(V_OW)}')
else:
    A('v_xor_b32 v3, 8, v3')
    A(f'v_lshl_add_u32 {v(V_OW+1)}, v3, 4, v4')
A(f's_mul_i32 {s(S_SOFW)}, {s(S_T0)}, {16*6656}')
A(f's_lshl_b32 {s(S_T1)}, {s(S_N0)}, 1')
A(f's_add_u32 {s(S_SOFW)}, {s(S_SOFW)}, {s(S_T1)}')
A(f's_lshl_b32 {s(S_M0X)}, {s(S_T0)}, 12')
A(f's_add_u32 {s(S_M0W)}, {s(S_M0X)}, 16384')
A('v_lshlrev_b32 v6, 4, v0')
A(f's_add_u32 m0, {s(S_M0X)}, {IDXLDS}')
A(f's_add_u32 {s(S_T1)}, {s(S_M0X)}, {IDXLDS}')
for q in range(4):
    A(f'buffer_load_dwordx4 v6, {s(R_IDX,4)}, {s(S_IB)} offen offset:{q*1024} lds'); q_.append(('idxd', 0))
A(f'v_add_u32 {v(V_IA)}, {s(S_T1)}, v1')
def issueW(t):
    sl = (t % NS)*SLOT
    if t % 2 == 0:
        field(S_FW, t//2)
        A(f's_mul_i32 {s(S_WK)}, {s(S_FW)}, {128*6656}')
        A(f's_add_u32 {s(S_WK)}, {s(S_WK)}, {s(S_SOFW)}')
    for q in range(4):
        A(f's_add_u32 m0, {s(S_M0W)}, {sl + q*1024}')
        A(f's_add_u32 {s(S_T1)}, {s(S_WK)}, {((t&1)*64 + q*4)*6656}')
        A(f'buffer_load_dwordx4 {v(V_OW+(q>>1))}, {s(R_W,4)}, {s(S_T1)} offen {OPT.get("wflag","").replace("+"," ")} lds'); q_.append(('W',t))
def idxread(j):
    field(S_FI, j)
    A(f's_lshl_b32 {s(S_FI)}, {s(S_FI)}, 2')
    A(f'v_add_u32 v7, {s(S_FI)}, {v(V_IA)}')
    for q in range(4):
        A(f'ds_read_b32 {v(V_IX+4*(j%NIX)+q)}, v7 offset:{q*8*104}')
def issueX(t):
    sl = (t % NS)*SLOT
    j = t//2
    if t % 2 == 0:
        if j > 0: A('s_waitcnt lgkmcnt(0)')
        for q in range(4):
            r = V_IX+4*(j%NIX)+q
            A(f'v_lshl_add_u32 {v(r)}, {v(r)}, 8, {v(4 + (q&1))}')
    A(f's_mov_b32 {s(S_T1)}, {(t&1)*128}')
    for q in range(4):
        A(f's_add_u32 m0, {s(S_M0X)}, {sl + q*1024}')
        A('s_nop 0')
        A(f'buffer_load_dwordx4 {v(V_IX+4*(j%NIX)+q)}, {s(R_TAB,4)}, {s(S_T1)} offen {OPT.get("xflag","").replace("+"," ")} lds'); q_.append(('X',t))
    if t % 2 == 0 and j+1 < 26: idxread(j+1)
def waitfor(pred):
    last = max([i for i,x in enumerate(q_) if pred(x)], default=-1)
    n = len(q_) - 1 - last
    assert n <= 63
    A(f's_waitcnt vmcnt({n})')
    del q_[:last+1]
A('v_and_b32 v3, 7, v0')
A('v_xor_b32 v4, v3, v2')
A('v_lshlrev_b32 v4, 4, v4')
A('v_xor_b32 v5, 64, v4')
issueW(0)
waitfor(lambda x: x[0].startswith('idx'))
stamp(1)
if OPT['stamps']: A('s_waitcnt lgkmcnt(0)')
issueX(0)
issueW(1); issueX(1)
waitfor(lambda x: x[1] <= 0)
stamp(2)
A('s_barrier')
for t in range(2, NS): issueW(t); issueX(t)
for t in range(NST-1):
    waitfor(lambda x: x[1] <= t+1)
    A('s_barrier')
    if t in (3,11,19,27,35,43) and OPT['stamps']: A(f's_memrealtime {s(S_STAMP+2*{3:4,11:6,19:7,27:8,35:9,43:10}[t],2)}')
    if t+NS < NST and not OPT['noload']:
        issueW(t+NS); issueX(t+NS)
stamp(3)
A.label('L_join')
A('s_barrier')
stamp(5)
A(f's_cmp_lg_u32 {s(S_WAVE)}, 0')
A('s_cbranch_scc1 L_fin')
A(f's_lshl_b32 {s(S_T0)}, {s(S_MT)}, 2')
A('v_mov_b32 v1, 0')
A('v_mov_b32 v2, 1')
A('s_mov_b64 exec, 1')
A(f'buffer_atomic_add v2, v1, {s(R_DBG,4)}, {s(S_T0)} offen sc0')
A('s_waitcnt vmcnt(0)')
A('s_mov_b64 exec, -1')
A(f'v_readfirstlane_b32 {s(S_T1)}, v2')
stamp(6)
A(f's_cmp_lg_u32 {s(S_T1)}, {NARR-1}')
A('s_cbranch_scc1 L_fin')
A('v_lshlrev_b32 v1, 3, v0')
A(f's_lshl_b32 {s(S_T0)}, {s(S_M0)}, 2')
A(f's_load_dword {s(S_T2)}, {s(S_BO,2)}, 0')
for r in range(NROWS):
    A(f'buffer_load_dwordx2 {v(16+2*r,2)}, v1, {s(R_WS,4)}, {s(S_T0)} offen sc1')
    A(f's_add_u32 {s(S_T0)}, {s(S_T0)}, 4096')
A('s_waitcnt lgkmcnt(0)')
A(f's_lshl_b32 {s(S_T2)}, {s(S_T2)}, 16')
A(f'v_mov_b32 v2, {s(S_T2)}')
A(f'v_mov_b32 v3, {s(S_T2)}')
for r in range(NROWS):
    A(f's_waitcnt vmcnt({NROWS-1-r})')
    A(f'v_add_f32 v2, v2, {v(16+2*r)}')
    A(f'v_add_f32 v3, v3, {v(17+2*r)}')
A('v_cvt_pk_bf16_f32 v2, v2, v3')
A('v_lshlrev_b32 v1, 2, v0')
A(f's_lshl_b32 {s(S_T0)}, {s(S_M0)}, 1')
A(f'buffer_store_dword v2, v1, {s(R_OUT,4)}, {s(S_T0)} offen')
A.label('L_fin')
stamp(11)
stamp_flush(4)
A('s_endpgm')
A.label('L_cin')
if OPT['cpf']:
    PFW = OPT['pfw']
    A(f's_cmp_lg_u32 {s(S_WAVE)}, 0')
    A('s_cbranch_scc1 L_end')
    A(f's_lshl_b32 {s(S_T1)}, {s(S_T1)}, 3')
    A(f's_add_u32 {s(S_T0)}, {s(S_T0)}, {s(S_T1)}')
    A(f's_cmp_ge_u32 {s(S_T0)}, {PFW}')
    A('s_cbranch_scc1 L_pfx')
    A('v_lshlrev_b32 v2, 7, v0')
    A(f's_add_u32 {s(S_T0)}, {s(S_T0)}, {OPT["cpfskip"]}')
    A(f's_lshl_b32 {s(S_T0)}, {s(S_T0)}, 13')
    A.label('L_pfw')
    for i in range(4):
        A(f'buffer_load_dword {v(16+i)}, v2, {s(R_W,4)}, {s(S_T0)} offen {PFF}')
        A(f's_add_u32 {s(S_T0)}, {s(S_T0)}, {PFW*8192}')
    A('s_waitcnt vmcnt(32)')
    A(f's_cmp_lt_u32 {s(S_T0)}, {3328*3328*2}')
    A('s_cbranch_scc1 L_pfw')
    stamp(2)
    A('s_waitcnt vmcnt(0)')
    A('s_branch L_fin')
    A.label('L_pfx')
    A(f's_sub_u32 {s(S_T0)}, {s(S_T0)}, {PFW}')
    A(f's_mul_i32 {s(S_T0)}, {s(S_T0)}, {64*104}')
    A('v_mul_u32_u24 v1, 104, v0')
    for c in range(6): A(f'buffer_load_dwordx4 {v(16+4*c,4)}, v1, {s(R_IDX,4)}, {s(S_T0)} offen offset:{16*c}')
    A(f'buffer_load_dwordx2 {v(40,2)}, v1, {s(R_IDX,4)}, {s(S_T0)} offen offset:96')
    A('s_waitcnt vmcnt(0)')
    stamp(1)
    for f in range(OPT['cpfskip']//104, 26):
        A(f'v_lshlrev_b32 {v(16+f)}, 8, {v(16+f)}')
        A(f'buffer_load_dword v50, {v(16+f)}, {s(R_TAB,4)}, 0 offen {PFF}')
        A(f'buffer_load_dword v51, {v(16+f)}, {s(R_TAB,4)}, 0 offen offset:128 {PFF}')
    stamp(2)
    A('s_waitcnt vmcnt(0)')
    A('s_branch L_fin')
A('s_endpgm')
A.label('L_end')
A('s_endpgm')

open(sys.argv[1], 'w').write(wrap(A.text(), 256, 512, LDS_BYTES))
```
